```python
import torch

def _softmax(x, axis=-1):
    return torch.softmax(x, dim=axis)
def _gelu(x):
    return torch.nn.functional.gelu(x, approximate="tanh")
def _silu(x):
    return torch.nn.functional.silu(x)
def _sigmoid(x):
    return torch.sigmoid(x)
def _layernorm(x, axis=-1, eps=1e-5):
    m = x.mean(dim=axis, keepdim=True)
    v = x.var(dim=axis, keepdim=True, unbiased=False)
    return (x - m) / torch.sqrt(v + eps)
def _scatter_add(tgt, idx, src, axis=0):
    return tgt.clone().index_add_(axis, idx, src)
def _segment_sum(src, seg, n):
    out = torch.zeros((n,) + src.shape[1:], dtype=src.dtype)
    return out.index_add_(0, seg, src)
def _pad(x, pw):
    flat = tuple(v for pair in reversed(pw) for v in pair)
    return torch.nn.functional.pad(x, flat)

kernel_name = 'gated_mix__linear_kernel_hedgehog__mixer_token_mlp__prompt'

def setup_inputs():

    _w = (lambda a: (lambda t: t.to(torch.bfloat16) if t.is_floating_point() else t)(torch.as_tensor(a)))
    def _A_setup():
        B, S, D, H = 1, 2048, 512, 32
        Dh = D // H
        return {
            "x": _w((lambda *s: torch.randn(*s, dtype=torch.bfloat16) * 0.05)(B, S, D)),
            "wqkv": _w((lambda *s: torch.randn(*s, dtype=torch.bfloat16) * 0.8)(D, 3 * D)),
            "w_phi": _w((lambda *s: torch.randn(*s, dtype=torch.bfloat16) * 0.8)(H, Dh, Dh) * (Dh ** -0.5)),
            "wo": _w((lambda *s: torch.randn(*s, dtype=torch.bfloat16) * 0.05)(D, D)),
        }
    _A_in = _A_setup()

    def _B_setup():
        B, S, D, F = 1, 2048, 512, 1792
        return {
            "x": _w((lambda *s: torch.randn(*s, dtype=torch.bfloat16) * 0.05)(B, S, D)),
            "w1": _w((lambda *s: torch.randn(*s, dtype=torch.bfloat16) * 0.4)(S, F) * (S ** -0.5)),
            "b1": _w((lambda *s: torch.randn(*s, dtype=torch.bfloat16) * 3.2)(F) * 0.02),
            "w2": _w((lambda *s: torch.randn(*s, dtype=torch.bfloat16) * 0.1)(F, S) * (F ** -0.5)),
            "b2": _w((lambda *s: torch.randn(*s, dtype=torch.bfloat16) * 0.4)(S) * 0.02),
        }
    _B_in = _B_setup()

    return {
        "A_x": _A_in["x"],
        "A_wqkv": _A_in["wqkv"],
        "A_w_phi": _A_in["w_phi"],
        "A_wo": _A_in["wo"],
        "B_x": _B_in["x"],
        "B_w1": _B_in["w1"],
        "B_b1": _B_in["b1"],
        "B_w2": _B_in["w2"],
        "B_b2": _B_in["b2"],
        "gate_w": _w((lambda *s: torch.randn(*s, dtype=torch.bfloat16) * 0.05)(512) * 16.0),
    }

def reference(A_x, A_wqkv, A_w_phi, A_wo, B_x, B_w1, B_b1, B_w2, B_b2, gate_w):
    def _A_ref(x, wqkv, w_phi, wo):
        B, S, D = x.shape
        H = 32; Dh = D // H
        qkv = (lambda x, *d: x.permute(*d))((x @ wqkv).reshape(B, S, 3, H, Dh), 2, 0, 3, 1, 4)
        q, k, v = qkv[0], qkv[1], qkv[2]
        pq = torch.einsum("bhsd,hdf->bhsf", q, w_phi)
        pk = torch.einsum("bhsd,hdf->bhsf", k, w_phi)
        phi_q = torch.concatenate([_softmax(pq, axis=-1), _softmax(-pq, axis=-1)], axis=-1)
        phi_k = torch.concatenate([_softmax(pk, axis=-1), _softmax(-pk, axis=-1)], axis=-1)
        kv = torch.einsum("bhsf,bhsd->bhfd", phi_k, v)
        z  = torch.einsum("bhsf->bhf", phi_k)
        num = torch.einsum("bhqf,bhfd->bhqd", phi_q, kv)
        den = torch.einsum("bhqf,bhf->bhq", phi_q, z)[..., None] + 1e-6
        o = num / den
        return (lambda x, *d: x.permute(*d))(o, 0, 2, 1, 3).reshape(B, S, D) @ wo

    def _B_ref(x, w1, b1, w2, b2):
        B, S, D = x.shape
        h = _layernorm(x, axis=-1)
        u = torch.einsum("bsd,sf->bdf", h, w1) + b1
        u = _gelu(u)
        y = torch.einsum("bdf,fs->bds", u, w2) + b2
        return (lambda x, *d: x.permute(*d))(y, 0, 2, 1)

    x = A_x
    g = _sigmoid((x * gate_w).sum(-1, keepdims=True))
    a = _A_ref(x, A_wqkv, A_w_phi, A_wo)
    b = _B_ref(x, B_w1, B_b1, B_w2, B_b2)
    return g * a + (1 - g) * b
```

```python
import re

def regs_of(tok):
    tok = tok.strip()
    tok = re.sub(r"^(neg|abs|sext)\((.*)\)$", r"\2", tok)
    tok = tok.lstrip("-").strip("|")
    m = re.fullmatch(r"([vsa])(\d+)", tok)
    if m: return [(m.group(1), int(m.group(2)))]
    m = re.fullmatch(r"([vsa])\[(\d+):(\d+)\]", tok)
    if m: return [(m.group(1), i) for i in range(int(m.group(2)), int(m.group(3)) + 1)]
    if tok == "vcc": return [("s", 106), ("s", 107)]
    if tok == "vcc_lo": return [("s", 106)]
    if tok == "vcc_hi": return [("s", 107)]
    if tok == "exec": return [("s", 126), ("s", 127)]
    if tok == "m0": return [("s", 124)]
    return []

TRANS = ("v_exp_f32", "v_log_f32", "v_rcp_f32", "v_rsq_f32", "v_sqrt_f32", "v_sin_f32", "v_cos_f32", "v_rcp_iflag_f32")

class Insn:
    def __init__(self, text):
        self.text = text
        t = text.split(";")[0].strip()
        t = re.sub(r"\s+(op_sel|op_sel_hi|neg_lo|neg_hi):\[[^\]]*\]", "", t)
        parts = t.split(None, 1)
        self.op = parts[0]
        rest = parts[1] if len(parts) > 1 else ""
        ops = [o.strip() for o in rest.split(",")] if rest else []
        self.mods = ""
        if ops:
            sp = ops[-1].split(None, 1)
            ops[-1] = sp[0]
            if len(sp) > 1: self.mods = sp[1]
        self.ops = ops
        op = self.op
        self.kind = "other"
        self.w = []
        self.r = []
        self.srcC = []
        self.srcAB = []
        self.storedata = []
        R = lambda i: regs_of(ops[i]) if i < len(ops) else []
        if op.startswith("v_mfma"):
            self.kind = "mfma"
            self.w = R(0); self.srcAB = R(1) + R(2); self.srcC = R(3); self.r = self.srcAB + self.srcC
            self.passes = 8 if "32x32x16" in op or "32x32x8" in op else 4
        elif op.startswith("v_"):
            self.kind = "valu"
            base = re.sub(r"_(e32|e64|dpp|sdwa)$", "", op)
            self.base = base
            self.trans = base in TRANS
            self.dpp = ("row_" in text or "quad_perm" in text or "wave_" in text or op.endswith("_dpp"))
            self.perm = base.startswith("v_permlane")
            if base.startswith("v_cmp"):
                self.w = R(0); self.r = sum([R(i) for i in range(1, len(ops))], [])
                if base.startswith("v_cmpx"): self.w += [("s", 126), ("s", 127)]
            elif base in ("v_readfirstlane_b32", "v_readlane_b32"):
                self.w = R(0); self.r = sum([R(i) for i in range(1, len(ops))], [])
            elif self.perm and "swap" in base:
                self.w = R(0) + R(1); self.r = R(0) + R(1)
            elif base in ("v_add_co_u32", "v_sub_co_u32", "v_addc_co_u32", "v_subb_co_u32", "v_div_scale_f32", "v_mad_u64_u32"):
                self.w = R(0) + R(1); self.r = sum([R(i) for i in range(2, len(ops))], [])
            else:
                self.w = R(0); self.r = sum([R(i) for i in range(1, len(ops))], [])
                if base in ("v_fmac_f32", "v_pk_fmac_f16", "v_writelane_b32", "v_fmac_f16", "v_dot2c_f32_bf16") or self.dpp: self.r += R(0)
                if base == "v_cndmask_b32" and len(ops) == 3: self.r += [("s", 106), ("s", 107)]
        elif op.startswith("buffer_") or op.startswith("global_") or op.startswith("flat_"):
            self.kind = "vmem"
            islds = re.search(r"\blds\b", self.mods) is not None or "_lds_" in op
            self.lds = islds
            if op in ("buffer_inv", "buffer_wbl2"):
                pass
            elif "store" in op or "atomic" in op:
                if op.startswith("buffer_"):
                    self.storedata = R(0); self.r = sum([R(i) for i in range(len(ops))], [])
                else:
                    self.storedata = R(1); self.r = sum([R(i) for i in range(len(ops))], [])
                if "atomic" in op and "sc0" in self.mods: self.w = R(0)
                self.wide = ("x3" in op or "x4" in op)
            elif islds:
                self.r = sum([R(i) for i in range(len(ops))], []) + [("s", 124)]
            else:
                self.w = R(0); self.r = sum([R(i) for i in range(1, len(ops))], [])
        elif op.startswith("ds_"):
            self.kind = "ds"
            if "write" in op:
                self.r = sum([R(i) for i in range(len(ops))], [])
            else:
                self.w = R(0); self.r = sum([R(i) for i in range(1, len(ops))], [])
        elif op.startswith("s_"):
            self.kind = "salu"
            if op.startswith("s_cmp") or op.startswith("s_cbranch") or op in ("s_branch", "s_waitcnt", "s_barrier", "s_nop", "s_endpgm", "s_setprio", "s_sleep", "s_bitcmp1_b32", "s_bitcmp0_b32"):
                self.r = sum([R(i) for i in range(len(ops))], [])
            else:
                self.w = R(0); self.r = sum([R(i) for i in range(1, len(ops))], [])
                if "saveexec" in op: self.w += [("s", 126), ("s", 127)]
    def states(self):
        if self.op == "s_nop": return int(self.ops[0], 0) + 1
        return 1

def need(p, c):
    n = 0
    pw = set(p.w); cr = set(c.r); cw = set(c.w)
    vw = {x for x in pw if x[0] in "va"}
    sw = {x for x in pw if x[0] == "s"}
    if p.kind == "valu":
        if c.kind == "mfma" and vw & cr: n = max(n, 2)
        if c.kind == "mfma" and (("s", 126) in sw): n = max(n, 4)
        if c.kind == "valu":
            if c.perm and vw & cr: n = max(n, 2)
            if c.dpp and vw & cr: n = max(n, 2)
            if c.dpp and ("s", 126) in sw: n = max(n, 5)
            if c.base in ("v_readlane_b32", "v_readfirstlane_b32") and vw & cr: n = max(n, 1)
            if p.trans and not c.trans and vw & (cr | cw): n = max(n, 1)
            if p.trans and c.trans and vw & cr: n = max(n, 1)
            if sw & cr:
                n = max(n, 4 if c.base in ("v_readlane_b32", "v_writelane_b32", "v_div_fmas_f32") else 2)
            if ("s", 126) in sw and (c.base in ("v_readlane_b32", "v_readfirstlane_b32", "v_writelane_b32") or c.perm): n = max(n, 4)
            if "sdwa" in p.op:
                if vw & (cr | cw): n = max(n, 1)
        if c.kind == "vmem" and sw & cr: n = max(n, 5)
        if c.kind in ("vmem", "ds") and p.trans and vw & cr: n = max(n, 1)
        if c.kind == "salu" and sw & cr: n = max(n, 1)
    if p.kind == "mfma":
        P = p.passes
        tbl = {4: (6, 8, 8, 3), 8: (10, 12, 12, 7)}[P]
        if c.kind == "mfma":
            if vw & set(c.srcAB): n = max(n, tbl[1])
            ov = vw & set(c.srcC)
            if ov:
                if not (set(c.srcC) == vw and c.passes == P): n = max(n, tbl[0])
            if (vw & cw) and not (set(c.srcC) == vw and c.passes == P):
                n = max(n, tbl[0])
        elif c.kind in ("valu", "vmem", "ds"):
            if vw & (cr | cw): n = max(n, tbl[2])
            if c.kind == "valu" and set(p.srcC) & cw: n = max(n, tbl[3])
    if p.kind == "salu":
        if ("s", 124) in sw and c.kind == "vmem" and getattr(c, "lds", False): n = max(n, 1)
        if ("s", 124) in sw and c.kind == "ds" and "addtid" in c.op: n = max(n, 1)
    if p.kind == "vmem" and p.storedata and getattr(p, "wide", False):
        if set(p.storedata) & cw: n = max(n, 2)
    return n

class Asm:
    def __init__(self):
        self.lines = []
        self.bg = []
        self.bg_every = 0
        self._cnt = 0
        self._inbg = False
    def __call__(self, s):
        for l in s.split("\n"):
            l = l.strip()
            if not l: continue
            self.lines.append(l)
            if self.bg and self.bg_every and not self._inbg and (l.startswith("v_") or l.startswith("ds_")) and not l.startswith("v_cmp") and not l.startswith("v_readfirst"):
                self._cnt += (2 if l.startswith(TRANS) else 4 if l.startswith("v_mfma") else 1)
                if self._cnt >= self.bg_every:
                    self._cnt = 0
                    self.bg_pop(1)
    def bg_pop(self, n=1):
        self._inbg = True
        for _ in range(n):
            if self.bg: self.bg.pop(0)()
        self._inbg = False
    def bg_flush(self): self.bg_pop(len(self.bg))
    def label(self, name): self.lines.append(name + ":")
    def finish(self):
        out = []
        hist = []
        W = 24
        def pad_for(c, hist):
            dist = 0; req = 0
            for p in reversed(hist[-W:]):
                nn = need(p, c)
                if nn > dist: req = max(req, nn - dist)
                dist += p.states()
                if dist >= 20: break
            return req
        items = []
        for l in self.lines:
            if l.endswith(":") or l.startswith(".") or l.startswith(";"):
                items.append(("raw", l))
            else:
                items.append(("ins", Insn(l)))
        res = []
        for kind, x in items:
            if kind == "raw":
                res.append((kind, x)); continue
            req = pad_for(x, hist)
            while req > 0:
                k = min(req, 16)
                nop = Insn(f"s_nop {k-1}")
                res.append(("ins", nop)); hist.append(nop); req -= k
            res.append((kind, x)); hist.append(x)
            if x.op == "s_endpgm" or x.op == "s_branch": hist = []
        labels = {x[:-1]: i for i, (k, x) in enumerate(res) if k == "raw" and x.endswith(":")}
        changed = True
        while changed:
            changed = False
            labels = {x[:-1]: i for i, (k, x) in enumerate(res) if k == "raw" and x.endswith(":")}
            for i, (k, x) in enumerate(res):
                if k == "ins" and (x.op.startswith("s_cbranch") or x.op == "s_branch"):
                    tgt = x.ops[0]
                    if tgt not in labels: continue
                    h = [y for kk, y in res[max(0, i - 40):i + 1] if kk == "ins"]
                    j = labels[tgt]; cnt = 0; worst = 0
                    hh = list(h)
                    nh = len(h)
                    for kk, y in res[j:j + 40]:
                        if kk != "ins": continue
                        dist = 0; req = 0
                        for idx in range(len(hh) - 1, -1, -1):
                            p = hh[idx]
                            if idx < nh:
                                nn = need(p, y)
                                if nn > dist: req = max(req, nn - dist)
                            dist += p.states()
                            if dist >= 20: break
                        worst = max(worst, req)
                        hh.append(y); cnt += 1
                        if y.op in ("s_endpgm", "s_branch") or cnt > 22: break
                    if worst > 0:
                        res.insert(i, ("ins", Insn(f"s_nop {min(worst,16)-1}")))
                        changed = True
                        break
        return "\n".join((x if k == "raw" else "    " + x.text) for k, x in res) + "\n"


class VM:
    def __init__(self, a): self.a = a; self.q = []
    def issue(self, tag): self.q.append(tag)
    def wait(self, tag, extra=""):
        idx = max([i for i, t in enumerate(self.q) if t == tag], default=-1)
        if idx < 0:
            if extra: self.a(f"s_waitcnt {extra}")
            return
        n = len(self.q) - 1 - idx
        assert n <= 63, n
        self.a(f"s_waitcnt vmcnt({n}) {extra}".strip())
        self.q = self.q[idx + 1:]
    def wait_all(self):
        self.a("s_waitcnt vmcnt(0)"); self.q = []

class Regs:
    def __init__(self, start=0): self.n = start; self.hi = start
    def alloc(self, k=1, align=1):
        self.n = (self.n + align - 1) // align * align
        r = self.n; self.n += k; self.hi = max(self.hi, self.n); return r
    def mark(self): return self.n
    def reset(self, m): self.n = m

def v(i, k=1): return f"v{i}" if k == 1 else f"v[{i}:{i+k-1}]"
def s(i, k=1): return f"s{i}" if k == 1 else f"s[{i}:{i+k-1}]"
```

```python
from asmlib import *

S, D, H, F = 2048, 512, 32, 1792
WS_HF  = 0x000000
WS_QF  = 0x200000
WS_UF  = 0x400000
WS_OF  = 0x600000
WS_KVP = 0x800000
WS_G   = 0xC00000
WS_END = 0xC02000

P_X, P_WQKV, P_WPHI, P_WO, P_BX, P_W1, P_B1, P_W2 = [16 + 2 * i for i in range(8)]
P_B2, P_GW, P_OUT, P_DBG = [32 + 2 * i for i in range(4)]
P_WS = 40

LOG2E = 1.4426950408889634

import struct
def f32hex(x): return "0x%08x" % struct.unpack("<I", struct.pack("<f", x))[0]

def header(a, name, nwg):
    a(f".globl {name}")
    a(".p2align 8")
    a(f".type {name},@function")
    a.label(name)
    a(f"s_cmp_ge_u32 s2, {nwg}")
    a(f"s_cbranch_scc1 L_{name}_end")
    a("s_load_dwordx16 s[16:31], s[0:1], 0")
    a("s_load_dwordx8 s[32:39], s[0:1], 64")
    a("s_load_dwordx2 s[40:41], s[0:1], 96")

def srd(a, d, base, nbytes, add=0):
    if add:
        a(f"s_add_u32 s{d}, s{base}, {hex(add)}")
        a(f"s_addc_u32 s{d+1}, s{base+1}, 0")
    else:
        a(f"s_mov_b32 s{d}, s{base}")
        a(f"s_mov_b32 s{d+1}, s{base+1}")
    a(f"s_mov_b32 s{d+2}, {hex(nbytes)}")
    a(f"s_mov_b32 s{d+3}, 0x20000")

def descriptor(name, nvgpr, nsgpr=102):
    if STAMP: nvgpr = 256
    nv = (nvgpr + 7) // 8 * 8
    acc = min(256, (nv + 3) // 4 * 4)
    return f""".amdhsa_kernel {name}
  .amdhsa_next_free_vgpr {nv}
  .amdhsa_next_free_sgpr {nsgpr}
  .amdhsa_accum_offset {acc}
  .amdhsa_group_segment_fixed_size 0
  .amdhsa_kernarg_size 104
  .amdhsa_user_sgpr_count 2
  .amdhsa_user_sgpr_kernarg_segment_ptr 1
  .amdhsa_system_sgpr_workgroup_id_x 1
  .amdhsa_float_denorm_mode_32 3
.end_amdhsa_kernel
"""

def wave_allreduce(a, op, regs, tmps):
    for sh in (8, 4, 2, 1):
        for r in regs:
            a(f"{op} v{r}, v{r}, v{r} row_ror:{sh} row_mask:0xf bank_mask:0xf")
    for sw in ("v_permlane16_swap_b32", "v_permlane32_swap_b32"):
        for r, t in zip(regs, tmps): a(f"v_mov_b32 v{t}, v{r}")
        for r, t in zip(regs, tmps): a(f"{sw} v{r}, v{t}")
        for r, t in zip(regs, tmps): a(f"{op} v{r}, v{r}, v{t}")

def half_combine(a, op, regs, tmps):
    for r, t in zip(regs, tmps): a(f"v_mov_b32 v{t}, v{r}")
    for r, t in zip(regs, tmps): a(f"v_permlane32_swap_b32 v{r}, v{t}")
    for r, t in zip(regs, tmps): a(f"{op} v{r}, v{r}, v{t}")

def round_bf16(a, regs, tmp):
    assert len(regs) % 2 == 0
    for i in range(0, len(regs), 2):
        a(f"v_cvt_pk_bf16_f32 v{tmp + i//2}, v{regs[i]}, v{regs[i+1]}")
    for i in range(0, len(regs), 2):
        a(f"v_lshlrev_b32 v{regs[i]}, 16, v{tmp + i//2}")
        a(f"v_and_b32 v{regs[i+1]}, 0xffff0000, v{tmp + i//2}")

def dual_softmax(a, p, out_pos, out_neg, T, sLOG2E):
    nh = len(p)
    EN = [[T + 8 * h + i for i in range(8)] for h in range(nh)]
    M = T + 8 * nh
    mx = [M + h for h in range(nh)]
    mn = [M + nh + h for h in range(nh)]
    tm = [M + 2 * nh + i for i in range(2 * nh)]
    sp = [M + 4 * nh + h for h in range(nh)]
    sn = [M + 5 * nh + h for h in range(nh)]
    for h in range(nh):
        a(f"v_max3_f32 v{mx[h]}, v{p[h][0]}, v{p[h][1]}, v{p[h][2]}")
        a(f"v_min3_f32 v{mn[h]}, v{p[h][0]}, v{p[h][1]}, v{p[h][2]}")
    for k in (3, 5):
        for h in range(nh):
            a(f"v_max3_f32 v{mx[h]}, v{mx[h]}, v{p[h][k]}, v{p[h][k+1]}")
            a(f"v_min3_f32 v{mn[h]}, v{mn[h]}, v{p[h][k]}, v{p[h][k+1]}")
    for h in range(nh):
        a(f"v_max_f32 v{mx[h]}, v{mx[h]}, v{p[h][7]}")
        a(f"v_min_f32 v{mn[h]}, v{mn[h]}, v{p[h][7]}")
    for r, t in zip(mx + mn, tm): a(f"v_mov_b32 v{t}, v{r}")
    for r, t in zip(mx + mn, tm): a(f"v_permlane32_swap_b32 v{r}, v{t}")
    for h in range(nh):
        a(f"v_max_f32 v{mx[h]}, v{mx[h]}, v{tm[h]}")
        a(f"v_min_f32 v{mn[h]}, v{mn[h]}, v{tm[nh+h]}")
    for h in range(nh):
        for i in range(8):
            a(f"v_sub_f32 v{EN[h][i]}, v{mn[h]}, v{p[h][i]}")
            a(f"v_sub_f32 v{p[h][i]}, v{p[h][i]}, v{mx[h]}")
    for h in range(nh):
        for i in range(8):
            a(f"v_mul_f32 v{EN[h][i]}, s{sLOG2E}, v{EN[h][i]}")
            a(f"v_mul_f32 v{p[h][i]}, s{sLOG2E}, v{p[h][i]}")
    for h in range(nh):
        for i in range(8):
            a(f"v_exp_f32 v{EN[h][i]}, v{EN[h][i]}")
            a(f"v_exp_f32 v{p[h][i]}, v{p[h][i]}")
    for h in range(nh):
        a(f"v_add_f32 v{sp[h]}, v{p[h][0]}, v{p[h][1]}")
        a(f"v_add_f32 v{sn[h]}, v{EN[h][0]}, v{EN[h][1]}")
    for i in range(2, 8):
        for h in range(nh):
            a(f"v_add_f32 v{sp[h]}, v{sp[h]}, v{p[h][i]}")
            a(f"v_add_f32 v{sn[h]}, v{sn[h]}, v{EN[h][i]}")
    half_combine(a, "v_add_f32", sp + sn, tm)
    for r in sp + sn: a(f"v_rcp_f32 v{r}, v{r}")
    for h in range(nh):
        for i in range(8):
            a(f"v_mul_f32 v{p[h][i]}, v{p[h][i]}, v{sp[h]}")
            a(f"v_mul_f32 v{EN[h][i]}, v{EN[h][i]}, v{sn[h]}")
    for h in range(nh):
        for i in range(4):
            a(f"v_cvt_pk_bf16_f32 v{out_pos[h]+i}, v{p[h][2*i]}, v{p[h][2*i+1]}")
            a(f"v_cvt_pk_bf16_f32 v{out_neg[h]+i}, v{EN[h][2*i]}, v{EN[h][2*i+1]}")
    return 8 * nh + 6 * nh

STAMP = False
WS_STAMP = 0xD00000
def stamp_init(a, kidx):
    if not STAMP: return
    a("s_memrealtime s[88:89]")
    a("s_memtime s[100:101]")
    a("s_waitcnt lgkmcnt(0)")
    a("v_mov_b32 v255, s88")
    a("v_writelane_b32 v255, s100, 16")
    srd(a, 84, P_WS, 0x100000, WS_STAMP)
    a("v_lshrrev_b32 v254, 6, v0")
    a("s_nop 1")
    a("v_readfirstlane_b32 s90, v254")
    a("s_lshl_b32 s91, s2, 3")
    a("s_add_u32 s90, s90, s91")
    a(f"s_add_u32 s90, s90, {kidx*2048}")
    a("s_lshl_b32 s90, s90, 7")
def stamp(a, slot):
    if not STAMP: return
    a("s_memrealtime s[88:89]")
    a("s_memtime s[100:101]")
    a("s_waitcnt lgkmcnt(0)")
    a(f"v_writelane_b32 v255, s88, {slot}")
    a(f"v_writelane_b32 v255, s100, {slot+16}")
def stamp_end(a, slot):
    if not STAMP: return
    a("s_mov_b64 exec, -1")
    a("s_waitcnt vmcnt(0)")
    stamp(a, slot)
    a("v_and_b32 v254, 63, v0")
    a("v_lshlrev_b32 v254, 2, v254")
    a("v_cmp_gt_u32 vcc, 0x80, v254")
    a("s_and_saveexec_b64 s[92:93], vcc")
    a("buffer_store_dword v255, v254, s[84:87], s90 offen")

OPT = dict(k2map='A', k2W=32, k2rot='v1', k2nt='', k1pf=0, k1pfnt='', hnt='')
```

```python
import sys
sys.path.insert(0, "gen")
import common
if '--stamp' in sys.argv:
    common.STAMP = True; sys.argv.remove('--stamp')
for _a in list(sys.argv):
    if '=' in _a:
        _k, _v = _a.split('=', 1); common.OPT[_k] = int(_v) if _v.lstrip('-').isdigit() else _v; sys.argv.remove(_a)
import importlib
mod = importlib.import_module(common.OPT.get('mod', 'fused'))
NAME = "gated_mix__linear_kernel_hedgehog__mixer_token_mlp__prompt"
ref = open(f"cdna_kernels/{NAME}.s.ref").read().splitlines()
hdr = [l for l in ref if l.startswith(";") and "@launch" not in l and "Override launch" not in l and "grid=ceil" not in l]
c, d, n = mod.gen(NAME + "_kernel")
out = "\n".join(hdr) + "\n"
out += f"; @launch grid=(256,1,1) block=({getattr(mod, 'BLOCK', 256)},1,1) lds={mod.LDS_BYTES}\n"
out += '.amdgcn_target "amdgcn-amd-amdhsa--gfx950"\n.text\n' + c + '.section .rodata,"a"\n.p2align 6\n' + d
path = sys.argv[1] if len(sys.argv) > 1 else f"cdna_kernels/{NAME}.s"
open(path, "w").write(out)
print("vgprs", n, "lines", len(out.splitlines()), "bytes", len(out))
```
